```python
import torch

def _softmax(x, axis=-1):
    return torch.softmax(x, dim=axis)
def _gelu(x):
    return torch.nn.functional.gelu(x, approximate="tanh")
def _silu(x):
    return torch.nn.functional.silu(x)
def _sigmoid(x):
    return torch.sigmoid(x)
def _layernorm(x, axis=-1, eps=1e-5):
    m = x.mean(dim=axis, keepdim=True)
    v = x.var(dim=axis, keepdim=True, unbiased=False)
    return (x - m) / torch.sqrt(v + eps)
def _scatter_add(tgt, idx, src, axis=0):
    return tgt.clone().index_add_(axis, idx, src)
def _segment_sum(src, seg, n):
    out = torch.zeros((n,) + src.shape[1:], dtype=src.dtype)
    return out.index_add_(0, seg, src)
def _pad(x, pw):
    flat = tuple(v for pair in reversed(pw) for v in pair)
    return torch.nn.functional.pad(x, flat)

kernel_name = 'standalone__mha_block_cached__near_ridge'

def setup_inputs():

    _w = (lambda a: (lambda t: t.to(torch.bfloat16) if t.is_floating_point() else t)(torch.as_tensor(a)))
    B, Sq, D = 16, 64, 1024
    H, Sk, Dh = 32, 512, 128
    return {
        "x": _w((lambda *s: torch.randn(*s, dtype=torch.bfloat16) * 0.8)(B, Sq, D)),
        "k_cache": _w((lambda *s: torch.randn(*s, dtype=torch.bfloat16) * 0.8)(B, H, Sk, Dh)),
        "v_cache": _w((lambda *s: torch.randn(*s, dtype=torch.bfloat16) * 0.05)(B, H, Sk, Dh)),
        "wq": _w((lambda *s: torch.randn(*s, dtype=torch.bfloat16) * 0.8)(D, H * Dh) * (D ** -0.5)),
        "wo": _w((lambda *s: torch.randn(*s, dtype=torch.bfloat16) * 0.05)(H * Dh, D) * ((H * Dh) ** -0.5)),
    }

def reference(x, k_cache, v_cache, wq, wo):
    B, Sq, D = x.shape
    H, Dh = 32, 128
    q = (lambda x, *d: x.permute(*d))((x @ wq).reshape(B, Sq, H, Dh), 0, 2, 1, 3)
    scores = torch.einsum("bhqd,bhkd->bhqk", q, k_cache) * (Dh ** -0.5)
    p = _softmax(scores, axis=-1)
    o = torch.einsum("bhqk,bhkd->bhqd", p, v_cache)
    return (lambda x, *d: x.permute(*d))(o, 0, 2, 1, 3).reshape(B, Sq, H * Dh) @ wo
```

```python
import re

REG_RE = re.compile(r'^(-|abs\(|\|)?([vas])(?:\[(\d+):(\d+)\]|(\d+))\)?\|?$')

def parse_reg(tok):
    tok = tok.strip()
    if tok in ('vcc',):
        return [('s', 106), ('s', 107)]
    if tok == 'vcc_lo': return [('s', 106)]
    if tok == 'vcc_hi': return [('s', 107)]
    if tok == 'exec': return [('s', 126), ('s', 127)]
    if tok == 'm0': return [('s', 124)]
    m = REG_RE.match(tok)
    if not m:
        return []
    k = m.group(2)
    if m.group(3) is not None:
        return [(k, i) for i in range(int(m.group(3)), int(m.group(4)) + 1)]
    return [(k, int(m.group(5)))]

TRANS = ('v_exp_f32', 'v_log_f32', 'v_rcp_f32', 'v_rsq_f32', 'v_sqrt_f32', 'v_sin_f32', 'v_cos_f32')

class Ins:
    def __init__(self, text):
        self.text = text
        t = text.split(';')[0].strip()
        self.is_label = t.endswith(':')
        self.is_dir = t.startswith('.') and not self.is_label
        self.op = ''
        self.reads = set(); self.writes = set()
        self.kind = 'none'
        if not t or self.is_label or self.is_dir:
            return
        parts = t.split(None, 1)
        op = parts[0]
        for suf in ('_e32', '_e64'):
            if op.endswith(suf): op = op[:-4]
        self.op = op
        rest = parts[1] if len(parts) > 1 else ''
        ops = [o.strip() for o in rest.split(',')] if rest else []
        mods = ''
        if ops:
            lp = ops[-1].split(None, 1)
            ops[-1] = lp[0]
            mods = lp[1] if len(lp) > 1 else ''
        self.mods = mods
        R = [parse_reg(o) for o in ops]
        self.R = R
        def rd(*idx):
            for i in idx:
                if i < len(R): self.reads.update(R[i])
        def wr(*idx):
            for i in idx:
                if i < len(R): self.writes.update(R[i])
        n = len(R)
        if op.startswith('v_mfma'):
            self.kind = 'mfma'
            self.passes = 8 if '32x32' in op else 4
            wr(0); rd(1, 2, 3)
            self.D = R[0]; self.AB = set(R[1]) | set(R[2]); self.C = R[3]
        elif op.startswith('v_'):
            self.kind = 'valu'
            if op.startswith('v_cmp'):
                wr(0); rd(*range(1, n))
            elif op.startswith('v_permlane'):
                wr(0, 1); rd(0, 1)
            elif op in ('v_add_co_u32', 'v_sub_co_u32', 'v_addc_co_u32', 'v_subb_co_u32'):
                wr(0, 1); rd(*range(2, n))
            elif op.startswith('v_fmac') or op.startswith('v_pk_fmac'):
                wr(0); rd(*range(0, n))
            elif op == 'v_nop':
                pass
            else:
                wr(0); rd(*range(1, n))
                if op == 'v_cndmask_b32' and n == 3:
                    self.reads.update(parse_reg('vcc'))
        elif op.startswith('ds_'):
            self.kind = 'ds'
            if op.startswith('ds_read') or 'permute' in op or 'swizzle' in op:
                wr(0); rd(*range(1, n))
            else:
                rd(*range(n))
        elif op.startswith('buffer_') or op.startswith('global_'):
            self.kind = 'vmem'
            allm = ' ' + mods + ' '
            self.lds = ' lds ' in allm or op.startswith('global_load_lds')
            if op in ('buffer_wbl2', 'buffer_inv'):
                pass
            elif 'load' in op and not self.lds:
                wr(0); rd(*range(1, n))
            elif 'atomic' in op and ' sc0 ' in allm and op.startswith('global_'):
                wr(0); rd(*range(1, n))
            else:
                rd(*range(n))
                if self.lds: self.reads.add(('s', 124))
            self.wide_store = ('store' in op) and (op.endswith('x4') or op.endswith('x3'))
            if self.wide_store:
                self.data = set(R[0]) if op.startswith('buffer_') else set(R[1])
        elif op.startswith('s_'):
            self.kind = 'salu'
            if op.startswith('s_cmp') or op.startswith('s_cbranch') or op in ('s_branch', 's_waitcnt', 's_barrier', 's_nop', 's_endpgm', 's_setprio', 's_sleep', 's_bitcmp1_b32', 's_bitcmp0_b32'):
                rd(*range(n))
            else:
                wr(0); rd(*range(1, n))
                if 'saveexec' in op:
                    self.writes.update(parse_reg('exec'))
        else:
            raise ValueError('unknown instr: ' + text)

    def states(self):
        if self.kind == 'none': return 0
        if self.op == 's_nop':
            return int(self.text.split(';')[0].split()[1], 0) + 1
        return 1

def vec(regs):
    return {r for r in regs if r[0] in 'va'}
def sca(regs):
    return {r for r in regs if r[0] == 's'}

def need(p, c):
    req = 0
    if p.kind == 'valu':
        pw = vec(p.writes)
        if c.kind == 'mfma' and pw & c.reads: req = max(req, 2)
        if c.kind == 'valu':
            if c.op.startswith('v_permlane') and pw & c.reads: req = max(req, 2)
            if c.op in ('v_readfirstlane_b32', 'v_readlane_b32') and pw & c.reads: req = max(req, 1)
            if 'dpp' in c.text or 'row_' in c.text or 'quad_perm' in c.text:
                if pw & c.reads: req = max(req, 2)
            if p.op in TRANS and pw & (c.reads): req = max(req, 1)
        if p.op in TRANS and c.kind in ('ds', 'vmem') and pw & c.reads: req = max(req, 1)
        ps = sca(p.writes)
        if ps:
            if c.kind in ('valu', 'mfma') and ps & c.reads:
                req = max(req, 4 if c.op in ('v_readlane_b32', 'v_writelane_b32') else 2)
            if c.kind == 'vmem' and ps & c.reads: req = max(req, 5)
    elif p.kind == 'mfma':
        D = set(p.D)
        big = p.passes == 8
        if c.kind == 'mfma':
            if D & c.AB: req = max(req, 12 if big else 8)
            if D & set(c.C):
                if not (c.C == p.D and c.passes == p.passes): req = max(req, 10 if big else 6)
        elif c.kind == 'valu':
            if D & (c.reads | c.writes): req = max(req, 12 if big else 8)
            if set(p.C) & c.writes: req = max(req, 7 if big else 3)
        elif c.kind in ('ds', 'vmem'):
            if D & (c.reads | c.writes): req = max(req, 12 if big else 8)
            if set(p.C) & c.writes: req = max(req, 7 if big else 3)
    elif p.kind == 'salu':
        if ('s', 124) in p.writes and c.kind == 'vmem' and getattr(c, 'lds', False): req = max(req, 1)
    elif p.kind == 'vmem':
        if getattr(p, 'wide_store', False):
            if c.kind in ('valu', 'mfma') and p.data & c.writes: req = max(req, 2)
            elif p.data & c.writes: req = max(req, 1)
    return req

def fix_hazards(lines, verbose=False):
    out = []
    added = 0
    for text in lines:
        c = Ins(text)
        if c.kind != 'none':
            dist = 0
            short = 0
            for p in reversed(out):
                if dist >= 12: break
                if p.kind == 'none':
                    continue
                r = need(p, c)
                if r - dist > short:
                    short = r - dist
                    why = p.text
                dist += p.states()
            if short > 0:
                if verbose: print(f'hazard: +{short} before [{text}] after [{why}]')
                out.append(Ins(f's_nop {short-1}'))
                added += short
        out.append(c)
    return [i.text for i in out], added

class Prog:
    def __init__(self):
        self.L = []
        self.vm = []
        self.lg = []
        self.vm_done = 0
        self.lg_done = 0
    def e(self, s):
        self.L.append(s)
    def c(self, s):
        self.L.append('; ' + s)
    def vmem(self, s, tag=None):
        self.L.append(s); self.vm.append(tag)
    def lds(self, s, tag=None):
        self.L.append(s); self.lg.append(tag)
    def _last(self, q, tag):
        idx = [i for i, t in enumerate(q) if t == tag]
        assert idx, f'tag {tag} never issued'
        return idx[-1]
    def wait_vm(self, tag):
        i = self._last(self.vm, tag)
        if i < self.vm_done: return
        n = len(self.vm) - 1 - i
        self.vm_done = i + 1
        if n > 63: n = 63
        self.L.append(f's_waitcnt vmcnt({n})')
    def wait_vm_all(self):
        self.vm_done = len(self.vm)
        self.L.append('s_waitcnt vmcnt(0)')
    def wait_lg(self, tag):
        i = self._last(self.lg, tag)
        if i < self.lg_done: return
        n = len(self.lg) - 1 - i
        self.lg_done = i + 1
        if n > 15: n = 15
        self.L.append(f's_waitcnt lgkmcnt({n})')
    def wait_lg_all(self, force=False):
        if self.lg_done == len(self.lg) and not force: return
        self.lg_done = len(self.lg)
        self.L.append('s_waitcnt lgkmcnt(0)')

def rng(k, a, n):
    return f'{k}[{a}:{a+n-1}]' if n > 1 else f'{k}{a}'
```

```python
import sys, math, struct
from asmlib import Prog, fix_hazards, rng

NAME = "standalone__mha_block_cached__near_ridge"
C_SCALE = (128 ** -0.5) * math.log2(math.e)
def f32(x): return "0x%08x" % struct.unpack("<I", struct.pack("<f", x))[0]

REGION = 40960
SLOT = 8192
WS_O = 0
WS_PART = 0x800000
WS_FLAG = 0x1800000
WS_STAMP = 0xF000000

class Cfg:
    kv_nt = True
    stamps = False
    rot = True
    wo_prefetch = True
    thr = 8.0

def kd(name, vgpr, acc, sgpr=102):
    return f""".amdhsa_kernel {name}
  .amdhsa_next_free_vgpr {vgpr}
  .amdhsa_next_free_sgpr {sgpr}
  .amdhsa_accum_offset {acc}
  .amdhsa_group_segment_fixed_size 0
  .amdhsa_kernarg_size 64
  .amdhsa_user_sgpr_count 2
  .amdhsa_user_sgpr_kernarg_segment_ptr 1
  .amdhsa_system_sgpr_workgroup_id_x 1
.end_amdhsa_kernel
"""

def srd(p, base, src, size):
    p.e(f"s_mov_b32 s{base}, s{src}")
    p.e(f"s_mov_b32 s{base+1}, s{src+1}")
    p.e(f"s_mov_b32 s{base+2}, {size}")
    p.e(f"s_mov_b32 s{base+3}, 0x20000")

def stamp(p, cfg, i):
    if cfg.stamps:
        p.e(f"s_memrealtime s[{80+2*i}:{81+2*i}]")

def stamp_flush(p, cfg, n, base_off, label):
    if not cfg.stamps: return
    p.e("s_waitcnt lgkmcnt(0)")
    p.e("s_cmp_lg_u32 s3, 0")
    p.e(f"s_cbranch_scc1 {label}")
    p.e("s_lshl_b32 s60, s2, 7")
    p.e(f"s_add_u32 s60, s60, {WS_STAMP + base_off}")
    p.e("v_mov_b32 v2, s60")
    p.e("v_cmp_eq_u32 vcc, 0, v1")
    p.e("s_and_saveexec_b64 s[62:63], vcc")
    for i in range(n):
        p.e(f"v_mov_b32 v4, s{80+2*i}")
        p.e(f"v_mov_b32 v5, s{81+2*i}")
        p.e(f"global_store_dwordx2 v2, v[4:5], s[18:19] offset:{8*i}")
        p.e("s_waitcnt vmcnt(0)")
    p.e(f"{label}:")

def prologue(p, cfg, endlabel):
    p.e("s_cmp_ge_u32 s2, 256")
    p.e(f"s_cbranch_scc1 {endlabel}")
    stamp(p, cfg, 0)
    p.e("s_load_dwordx8 s[4:11], s[0:1], 0")
    p.e("s_load_dwordx8 s[12:19], s[0:1], 32")
    p.e("v_lshrrev_b32 v2, 6, v0")
    p.e("v_and_b32 v1, 63, v0")
    p.e("v_readfirstlane_b32 s3, v2")
    p.e("s_and_b32 s52, s2, 3")
    p.e("s_lshr_b32 s53, s2, 2")
    p.e("s_and_b32 s53, s53, 1")
    p.e("s_lshr_b32 s54, s2, 3")
    p.e("s_and_b32 s55, s54, 7")
    p.e("s_lshl_b32 s44, s52, 3")
    p.e("s_add_u32 s44, s44, s55")
    p.e("s_lshr_b32 s54, s54, 3")
    p.e("s_lshl_b32 s45, s53, 2")
    p.e("s_add_u32 s45, s45, s54")
    if cfg.rot:
        p.e("s_lshl_b32 s46, s55, 1")
        p.e("s_lshl_b32 s51, s54, 2")
        p.e("s_add_u32 s46, s46, s51")
    else:
        p.e("s_mov_b32 s46, 0")

def lane_fields(p):
    p.e("v_lshrrev_b32 v40, 5, v1")
    p.e("v_bfe_u32 v41, v1, 4, 1")
    p.e("v_bfe_u32 v42, v1, 2, 2")
    p.e("v_and_b32 v43, 3, v1")
    p.e("v_lshrrev_b32 v44, 4, v1")
    p.e("v_and_b32 v45, 15, v1")
    p.e("v_and_b32 v46, 31, v1")

def gemm128(p, cfg, nstage, nbuf, issue_stage, a_read, b_read, acc, fa, fb, hook=None):
    depth = nbuf - 1
    for s in range(min(depth, nstage)):
        for part in range(8):
            issue_stage(s, part)
    def reads(s, ks):
        buf = s % nbuf
        par = ks & 1
        for t in range(2):
            a_read(buf, t, ks, fa + par * 8 + t * 4, ('f', s, ks))
        for t in range(2):
            b_read(buf, t, ks, fb + par * 8 + t * 4, ('f', s, ks))
    first = True
    for s in range(nstage):
        p.c(f"gemm stage {s}")
        p.wait_vm(('st', s))
        p.e("s_barrier")
        reads(s, 0)
        for ks in range(4):
            if ks < 3:
                reads(s, ks + 1)
            p.wait_lg(('f', s, ks))
            par = ks & 1
            n = 0
            for at in range(2):
                for bt in range(2):
                    d = acc + (at * 2 + bt) * 16
                    cin = "0" if first else rng('v', d, 16)
                    p.e(f"v_mfma_f32_32x32x16_bf16 {rng('v', d, 16)}, {rng('a', fa + par*8 + at*4, 4)}, {rng('a', fb + par*8 + bt*4, 4)}, {cin}")
                    if n in (0, 2) and s + depth < nstage:
                        issue_stage(s + depth, ks * 2 + n // 2)
                    if hook: hook(s, ks, n)
                    n += 1
            first = False

def gen_k1(cfg):
    p = Prog()
    e = p.e
    prologue(p, cfg, "L_k1_end")
    lane_fields(p)
    e("s_waitcnt lgkmcnt(0)")
    srd(p, 20, 4, 2097152)
    srd(p, 24, 6, 67108864)
    srd(p, 28, 8, 67108864)
    srd(p, 32, 10, 8388608)
    srd(p, 36, 18, 0x2000000)
    srd(p, 40, 12, 8388608)
    e("s_and_b32 s58, s3, 1")
    e("s_lshr_b32 s59, s3, 1")
    e(f"s_mul_i32 s50, s3, {REGION}")
    e("s_lshl_b32 s61, s3, 10")
    e("s_lshl_b32 s47, s45, 18")
    e("s_lshl_b32 s51, s3, 14")
    e("s_add_u32 s47, s47, s51")
    e("s_lshl_b32 s48, s44, 8")
    e("s_lshl_b32 s51, s3, 15")
    e("s_add_u32 s48, s48, s51")
    e("s_lshl_b32 s49, s45, 1")
    e("s_add_u32 s49, s49, s59")
    e("s_lshl_b32 s49, s49, 5")
    e("s_add_u32 s49, s49, s44")
    e("s_lshl_b32 s49, s49, 17")
    e("s_lshl_b32 s51, s58, 16")
    e("s_add_u32 s49, s49, s51")
    e(f"s_mov_b32 s56, {f32(C_SCALE)}")
    e("s_lshl_b32 s51, s58, 2")
    e("v_add_u32 v32, s51, v44")
    e("v_and_b32 v33, 7, v1")
    e("v_xor_b32 v32, v32, v33")
    e("v_lshlrev_b32 v32, 4, v32")
    e("v_lshrrev_b32 v33, 3, v1")
    e("v_lshl_add_u32 v2, v33, 11, v32")
    e("v_lshlrev_b32 v32, 2, v44")
    e("v_xor_b32 v32, v32, v45")
    e("v_lshlrev_b32 v32, 4, v32")
    e("v_lshl_add_u32 v3, v44, 13, v32")
    e("v_lshl_add_u32 v8, v44, 8, v32")
    for j in range(4):
        e(f"v_add_u32 v32, {4*j}, v44")
        e("v_xor_b32 v32, v32, v45")
        e("v_lshlrev_b32 v32, 4, v32")
        e(f"v_lshl_add_u32 v{4+j}, v44, 8, v32")
    ntf = " nt" if cfg.kv_nt else ""
    fills = ['K0', 'K1', 'V0'] + sum([[f'K{t+2}', f'V{t+1}'] for t in range(6)], []) + ['V7']
    assert len(fills) == 16
    slot_of = {f: i % 5 for i, f in enumerate(fills)}
    def fill_part(f, j):
        t = int(f[1]); isk = f[0] == 'K'
        key = (f, j >> 2)
        if getattr(p, 'm0', None) != key:
            e(f"s_add_u32 m0, s50, {slot_of[f]*SLOT + (j>>2)*4096}")
            e(f"s_add_u32 s67, s49, {t*8192 + (j>>2)*4096}")
            p.m0 = key
        vo = f"v{4 + (j & 3)}" if isk else "v8"
        sr = "s[24:27]" if isk else "s[28:31]"
        off = f" offset:{(j&3)*1024}" if j & 3 else ""
        p.vmem(f"buffer_load_dwordx4 {vo}, {sr}, s67 offen{off}{ntf} lds", f)
    def issue_stage(s, part):
        buf = s % 3
        i = part & 3
        p.m0 = None
        if part == 0:
            e(f"s_add_u32 s63, s46, {s}")
            e("s_and_b32 s63, s63, 15")
            e("s_lshl_b32 s64, s63, 7")
            e("s_add_u32 s64, s64, s47")
            e("s_lshl_b32 s65, s63, 19")
            e("s_add_u32 s65, s65, s48")
        if part < 4:
            e(f"s_add_u32 m0, s61, {(i>>1)*REGION + 16384 + buf*8192 + (i&1)*4096}")
            e(f"s_add_u32 s66, s64, {i*65536}")
            p.vmem("buffer_load_dwordx4 v2, s[20:23], s66 offen lds", ('st', s))
        else:
            e(f"s_add_u32 m0, s61, {(2+(i>>1))*REGION + 16384 + buf*8192 + (i&1)*4096}")
            e(f"s_add_u32 s66, s65, {i*16*8192}")
            p.vmem("buffer_load_dwordx4 v3, s[32:35], s66 offen lds", ('st', s))
    def addr_setup():
        e(f"s_mul_i32 s51, s59, {REGION}")
        e("v_bfe_u32 v33, v1, 1, 3")
        e("v_lshl_add_u32 v34, v46, 7, s51")
        for ks in range(4):
            e(f"v_add_u32 v32, {2*ks}, v40")
            e("v_xor_b32 v32, v32, v33")
            e(f"v_lshl_add_u32 v{9+ks}, v32, 4, v34")
        e("v_lshl_add_u32 v33, v40, 3, v42")
        e("v_lshlrev_b32 v33, 8, v33")
        e("v_lshl_add_u32 v33, v41, 5, v33")
        e("v_and_b32 v34, 1, v43")
        e("v_lshlrev_b32 v34, 1, v34")
        e("v_lshrrev_b32 v35, 1, v43")
        e("v_or_b32 v34, v34, v35")
        e("v_lshl_add_u32 v33, v34, 3, v33")
        e(f"v_add_u32 v33, {2*REGION + 16384}, v33")
        e("s_lshl_b32 s51, s58, 1")
        for dt in range(2):
            e(f"s_add_u32 s62, s51, {dt}")
            e("v_xor_b32 v32, s62, v42")
            e(f"v_lshl_add_u32 v{13+dt}, v32, 6, v33")
        e("v_lshl_add_u32 v34, v46, 8, s50")
        for s in range(8):
            e(f"v_add_u32 v32, {2*s}, v40")
            e("v_xor_b32 v32, v32, v45")
            e(f"v_lshl_add_u32 v{15+s}, v32, 4, v34")
        e("v_lshl_add_u32 v33, v40, 2, v42")
        e("v_lshl_add_u32 v33, v33, 8, s50")
        e("v_lshl_add_u32 v33, v41, 5, v33")
        e("v_lshl_add_u32 v33, v43, 3, v33")
        for T in range(4):
            e(f"v_xor_b32 v32, {T}, v42")
            e(f"v_lshl_add_u32 v{23+T}, v32, 6, v33")
    def a_read(buf, dt, ks, dst, tag):
        base = (ks >> 1) * REGION + buf * 8192 + (ks & 1) * 4096
        p.lds(f"ds_read_b64_tr_b16 {rng('a', dst, 2)}, v{13+dt} offset:{base}", tag)
        p.lds(f"ds_read_b64_tr_b16 {rng('a', dst+2, 2)}, v{13+dt} offset:{base+1024}", tag)
    def b_read(buf, qt, ks, dst, tag):
        p.lds(f"ds_read_b128 {rng('a', dst, 4)}, v{9+ks} offset:{16384 + buf*8192 + qt*4096}", tag)

    started = {}
    def stage_wrap(s, part):
        issue_stage(s, part)
        if s == 1 and part == 7:
            addr_setup()
    early = [('K0', j) for j in range(8)] + [('K1', j) for j in range(8)]
    def hook(s, ks, n):
        if n == 3 and early and s >= cfg_early_start:
            f, j = early.pop(0)
            fill_part(f, j)
    cfg_early_start = getattr(cfg, 'early_start', 0)
    QACC = 64
    gemm128(p, cfg, 16, 3, stage_wrap, a_read, b_read, QACC, 64, 80, hook)
    while early:
        fill_part(*early.pop(0))
    stamp(p, cfg, 1)
    p.c("Q exchange")
    e(f"v_lshl_add_u32 v32, v1, 4, s50")
    tmp = 128
    for dt in range(2):
        for qt in range(2):
            a = QACC + (dt * 2 + qt) * 16
            for j in range(2):
                r = tmp + ((dt * 2 + j) * 2 + qt) * 4
                for i in range(4):
                    e(f"v_cvt_pk_bf16_f32 v{r+i}, v{a + 8*j + 2*i}, v{a + 8*j + 2*i + 1}")
                p.lds(f"ds_write_b128 v32, {rng('v', r, 4)} offset:{4*SLOT + ((dt*2+j)*2+qt)*1024}", 'qw')
    p.wait_lg_all()
    e("s_barrier")
    e(f"s_mul_i32 s51, s59, {2*REGION}")
    e("s_lshl_b32 s62, s58, 10")
    e("v_lshl_add_u32 v33, v1, 4, s51")
    e("v_add_u32 v34, s62, v33")
    e("s_xor_b32 s62, s62, 1024")
    e("v_add_u32 v35, s62, v33")
    e(f"v_add_u32 v36, {REGION}, v34")
    e(f"v_add_u32 v37, {REGION}, v35")
    for ks in range(8):
        for qt in range(2):
            va = (34 + qt) if ks < 4 else (36 + qt)
            p.lds(f"ds_read_b128 {rng('a', (ks*2+qt)*4, 4)}, v{va} offset:{4*SLOT + (ks&3)*2048}", 'qr')
    for f in fills[2:4]:
        for j in range(8): fill_part(f, j)
    p.wait_lg_all()
    e("s_barrier")
    for j in range(8): fill_part(fills[4], j)
    nxt = [5]
    pend = []
    def release(f):
        i = fills.index(f) + 5
        if i < 16:
            for j in range(8): pend.append((fills[i], j))
    def drain(n):
        for _ in range(n):
            if pend: fill_part(*pend.pop(0))

    KF, VF = 64, 96
    SB = [64, 96]
    PB = 48
    OB = 128
    NM = [27, 28]; LS = [29, 30]
    def k_reads(t):
        p.wait_vm(f'K{t}')
        for s in range(8):
            p.lds(f"ds_read_b128 {rng('a', KF + 4*s, 4)}, v{15+s} offset:{slot_of[f'K{t}']*SLOT}", ('k', t, s))
    def v_reads(t):
        p.wait_vm(f'V{t}')
        for j in range(2):
            for T in range(4):
                d = VF + (j * 4 + T) * 4
                b = slot_of[f'V{t}'] * SLOT + j * 4096
                p.lds(f"ds_read_b64_tr_b16 {rng('a', d, 2)}, v{23+T} offset:{b}", ('v', t, j, T))
                p.lds(f"ds_read_b64_tr_b16 {rng('a', d+2, 2)}, v{23+T} offset:{b+2048}", ('v', t, j, T))
    def qk_mfmas(t):
        out = []
        S = SB[t & 1]
        for s in range(8):
            for qt in range(2):
                d = S + qt * 16
                cin = "0" if s == 0 else rng('v', d, 16)
                out.append((('k', t, s), f"v_mfma_f32_32x32x16_bf16 {rng('v', d, 16)}, {rng('a', KF+4*s, 4)}, {rng('a', (s*2+qt)*4, 4)}, {cin}"))
        return out
    def pv_mfmas(t):
        out = []
        for j in range(2):
            for T in range(4):
                for qt in range(2):
                    d = OB + (T * 2 + qt) * 16
                    cin = "0" if (t == 0 and j == 0) else rng('v', d, 16)
                    out.append((('v', t, j, T), f"v_mfma_f32_32x32x16_bf16 {rng('v', d, 16)}, {rng('a', VF+(j*4+T)*4, 4)}, {rng('v', PB+(qt*2+j)*4, 4)}, {cin}"))
        return out
    def tile_max(t):
        S = SB[t & 1]
        out = []
        for qt in range(2):
            b = S + qt * 16
            tm = 32 + qt
            out.append(f"v_max3_f32 v{tm}, v{b}, v{b+1}, v{b+2}")
            for i in range(3, 15, 2):
                out.append(f"v_max3_f32 v{tm}, v{tm}, v{b+i}, v{b+i+1}")
            out.append(f"v_max_f32 v{tm}, v{tm}, v{b+15}")
        a, b2 = out[:8], out[8:]
        return [x for pr in zip(a, b2) for x in pr]
    rare = []
    def max_update(t):
        if t == 0:
            for qt in range(2):
                e(f"v_mov_b32 v{34+qt}, v{32+qt}")
            for qt in range(2):
                e(f"v_permlane32_swap_b32 v{32+qt}, v{34+qt}")
            for qt in range(2):
                e(f"v_max_f32 v{32+qt}, v{32+qt}, v{34+qt}")
            for qt in range(2):
                e(f"v_mul_f32 v{NM[qt]}, s56, v{32+qt}")
            for qt in range(2):
                e(f"v_sub_f32 v{NM[qt]}, 0, v{NM[qt]}")
                e(f"v_mov_b32 v{LS[qt]}, 0")
        else:
            e(f"v_fma_f32 v34, v32, s56, v{NM[0]}")
            e(f"v_fma_f32 v35, v33, s56, v{NM[1]}")
            e("v_max_f32 v34, v34, v35")
            e(f"v_cmp_lt_f32 vcc, {f32(cfg.thr)}, v34")
            e(f"s_cbranch_vccnz L_rare{t}")
            e(f"L_back{t}:")
            r = [f"L_rare{t}:", "s_nop 15"]
            for qt in range(2):
                r.append(f"v_mov_b32 v{34+qt}, v{32+qt}")
            r.append("s_nop 1")
            for qt in range(2):
                r.append(f"v_permlane32_swap_b32 v{32+qt}, v{34+qt}")
            r.append("s_nop 1")
            for qt in range(2):
                r.append(f"v_max_f32 v{32+qt}, v{32+qt}, v{34+qt}")
                r.append(f"v_mul_f32 v{32+qt}, s56, v{32+qt}")
                r.append(f"v_max_f32 v{32+qt}, v{32+qt}, -v{NM[qt]}")
                r.append(f"v_add_f32 v{34+qt}, v{32+qt}, v{NM[qt]}")
                r.append(f"v_exp_f32 v{34+qt}, -v{34+qt}")
                r.append(f"v_sub_f32 v{NM[qt]}, 0, v{32+qt}")
                r.append("s_nop 0")
                r.append(f"v_mul_f32 v{LS[qt]}, v{LS[qt]}, v{34+qt}")
                for T in range(4):
                    for i in range(16):
                        o = OB + (T * 2 + qt) * 16 + i
                        r.append(f"v_mul_f32 v{o}, v{o}, v{34+qt}")
            r.append("s_nop 3")
            r.append(f"s_branch L_back{t}")
            rare.extend(r)
    def softmax_ops(t):
        S = SB[t & 1]
        out = []
        for j in range(2):
            for qt in range(2):
                b = S + qt * 16 + 8 * j
                for i in range(8):
                    out.append(f"v_fma_f32 v{b+i}, v{b+i}, s56, v{NM[qt]}")
                for i in range(8):
                    out.append(f"v_exp_f32 v{b+i}, v{b+i}")
                for i in range(4):
                    out.append(f"v_cvt_pk_bf16_f32 v{PB+(qt*2+j)*4+i}, v{b+2*i}, v{b+2*i+1}")
                for i in range(8):
                    out.append(f"v_add_f32 v{LS[qt]}, v{LS[qt]}, v{b+i}")
        return out
    def interleave(mf, fill, dma_every=2):
        nf = len(fill); k = 0
        for i, (tag, m) in enumerate(mf):
            p.wait_lg(tag)
            e(m)
            tgt = (i + 1) * nf // len(mf)
            while k < tgt:
                e(fill[k]); k += 1
            if i % dma_every == 1: drain(1)

    p.c("attention prologue")
    k_reads(0)
    interleave(qk_mfmas(0), [])
    release('K0')
    for t in range(8):
        p.c(f"tile {t}")
        if t < 7: k_reads(t + 1)
        for x in tile_max(t): e(x)
        max_update(t)
        sm = softmax_ops(t)
        if t < 7:
            interleave(qk_mfmas(t + 1), sm)
            release(f'K{t+1}')
        else:
            for x in sm: e(x)
        v_reads(t)
        interleave(pv_mfmas(t), [])
        release(f'V{t}')
        drain(16)
    stamp(p, cfg, 2)
    p.c("epilogue")
    for qt in range(2):
        e(f"v_mov_b32 v{34+qt}, v{LS[qt]}")
    for qt in range(2):
        e(f"v_permlane32_swap_b32 v{LS[qt]}, v{34+qt}")
    for qt in range(2):
        e(f"v_add_f32 v{LS[qt]}, v{LS[qt]}, v{34+qt}")
    e(f"v_lshl_add_u32 v32, v1, 4, s50")
    e(f"v_mov_b32 v36, v{NM[1]}")
    e(f"v_mov_b32 v37, v{LS[1]}")
    p.lds(f"ds_write_b64 v32, v[36:37] offset:{16384}", 'ow')
    for T in range(4):
        for i in range(4):
            o = OB + (T * 2 + 1) * 16 + 4 * i
            p.lds(f"ds_write_b128 v32, {rng('v', o, 4)} offset:{(T*4+i)*1024}", 'ow')
    p.wait_lg_all()
    e("s_barrier")
    e(f"s_xor_b32 s51, s3, 1")
    e(f"s_mul_i32 s51, s51, {REGION}")
    e("v_lshl_add_u32 v33, v1, 4, s51")
    p.lds(f"ds_read_b64 v[36:37], v33 offset:{16384}", 'ml')
    for T in range(4):
        for i in range(4):
            p.lds(f"ds_read_b128 {rng('v', 64 + T*16 + 4*i, 4)}, v33 offset:{(T*4+i)*1024}", ('or', T))
    p.wait_lg('ml')
    e(f"v_min_f32 v38, v{NM[0]}, v36")
    e(f"v_sub_f32 v39, v38, v{NM[0]}")
    e("v_sub_f32 v38, v38, v36")
    e("v_exp_f32 v39, v39")
    e("v_exp_f32 v38, v38")
    e(f"v_mul_f32 v34, v{LS[0]}, v39")
    e("v_fma_f32 v34, v37, v38, v34")
    e("v_rcp_f32 v34, v34")
    e("v_mul_f32 v39, v39, v34")
    e("v_mul_f32 v38, v38, v34")
    e("s_lshl_b32 s51, s45, 2")
    e("s_add_u32 s51, s51, s3")
    e("s_lshl_b32 s51, s51, 18")
    e("s_lshl_b32 s62, s44, 13")
    e("s_add_u32 s51, s51, s62")
    e("s_add_u32 s62, s51, 4096")
    e("v_lshlrev_b32 v32, 4, v1")
    for T in range(4):
        p.wait_lg(('or', T))
        o = OB + (T * 2) * 16
        for i in range(16):
            e(f"v_mul_f32 v{o+i}, v{o+i}, v39")
        for i in range(16):
            e(f"v_fmac_f32 v{o+i}, v{64+T*16+i}, v38")
        for j in range(2):
            for i in range(4):
                e(f"v_cvt_pk_bf16_f32 v{o+16+j*4+i}, v{o+8*j+2*i}, v{o+8*j+2*i+1}")
            k = 2 * T + j
            so = "s51" if k < 4 else "s62"
            off = f" offset:{(k&3)*1024}" if k & 3 else ""
            p.vmem(f"buffer_store_dwordx4 {rng('v', o+16+j*4, 4)}, v32, s[36:39], {so} offen{off}", 'ost')
    e("s_cmp_ge_u32 s2, 64")
    e("s_cbranch_scc1 L_k1_noflag")
    e("s_cmp_lg_u32 s3, 0")
    e("s_cbranch_scc1 L_k1_noflag")
    e("s_lshl_b32 s51, s2, 8")
    e(f"s_add_u32 s51, s51, {WS_FLAG}")
    e("v_lshlrev_b32 v33, 2, v1")
    e("v_mov_b32 v34, 0")
    e("buffer_store_dword v34, v33, s[36:39], s51 offen")
    e("L_k1_noflag:")
    if cfg.stamps:
        e("s_waitcnt vmcnt(0)")
    stamp(p, cfg, 3)
    stamp_flush(p, cfg, 4, 0, "L_k1_st")
    e("L_k1_end:")
    e("s_endpgm")
    for x in rare: e(x)
    return p.L

def gen_k2(cfg):
    p = Prog()
    e = p.e
    NB = 4
    prologue(p, cfg, "L_k2_end")
    lane_fields(p)
    e("s_waitcnt lgkmcnt(0)")
    srd(p, 36, 18, 0x2000000)
    srd(p, 40, 12, 8388608)
    srd(p, 20, 14, 2097152)
    e("s_and_b32 s58, s3, 1")
    e("s_lshr_b32 s59, s3, 1")
    e("s_lshl_b32 s47, s45, 2")
    e("s_add_u32 s47, s47, s3")
    e("s_lshl_b32 s47, s47, 18")
    e("s_lshl_b32 s51, s52, 16")
    e("s_add_u32 s47, s47, s51")
    e("s_lshl_b32 s48, s52, 21")
    e("s_lshl_b32 s51, s3, 15")
    e("s_add_u32 s48, s48, s51")
    e("s_lshl_b32 s51, s55, 8")
    e("s_add_u32 s48, s48, s51")
    e("s_lshl_b32 s61, s3, 12")
    e("v_lshlrev_b32 v2, 4, v1")
    e("v_lshlrev_b32 v32, 2, v44")
    e("v_xor_b32 v32, v32, v45")
    e("v_lshlrev_b32 v32, 4, v32")
    e("v_lshl_add_u32 v3, v44, 11, v32")
    def issue_stage(s, part):
        buf = s % NB
        i = part & 3
        if part == 0:
            e(f"s_add_u32 s63, s46, {s}")
            e("s_and_b32 s63, s63, 15")
            e("s_lshl_b32 s64, s63, 12")
            e("s_add_u32 s64, s64, s47")
            e("s_lshl_b32 s65, s63, 17")
            e("s_add_u32 s65, s65, s48")
        if part < 4:
            e(f"s_add_u32 m0, s61, {buf*32768}")
            off = f" offset:{i*1024}" if i else ""
            p.vmem(f"buffer_load_dwordx4 v2, s[36:39], s64 offen{off} lds", ('st', s))
        else:
            e(f"s_add_u32 m0, s61, {buf*32768 + 16384 + i*1024}")
            e(f"s_add_u32 s66, s65, {i*8192}")
            p.vmem("buffer_load_dwordx4 v3, s[40:43], s66 offen lds", ('st', s))
    def addr_setup():
        e("s_lshl_b32 s51, s59, 13")
        e("v_lshl_add_u32 v9, v1, 4, s51")
        e("v_add_u32 v10, 65536, v9")
        e("v_lshl_add_u32 v33, v40, 2, v42")
        e("v_lshlrev_b32 v33, 8, v33")
        e("v_lshl_add_u32 v33, v41, 5, v33")
        e("v_and_b32 v34, 1, v43")
        e("v_lshlrev_b32 v34, 1, v34")
        e("v_lshrrev_b32 v35, 1, v43")
        e("v_or_b32 v34, v34, v35")
        e("v_lshl_add_u32 v33, v34, 3, v33")
        e(f"v_add_u32 v33, 16384, v33")
        e("s_lshl_b32 s51, s58, 1")
        for nt in range(2):
            e(f"s_add_u32 s62, s51, {nt}")
            e("v_xor_b32 v32, s62, v42")
            e(f"v_lshl_add_u32 v{13+nt}, v32, 6, v33")
            e(f"v_add_u32 v{15+nt}, 65536, v{13+nt}")
    def stage_wrap(s, part):
        issue_stage(s, part)
        if s == NB - 2 and part == 7:
            addr_setup()
    def a_read(buf, nt, ks, dst, tag):
        va = (13 if buf < 2 else 15) + nt
        base = (buf & 1) * 32768 + ks * 4096
        p.lds(f"ds_read_b64_tr_b16 {rng('a', dst, 2)}, v{va} offset:{base}", tag)
        p.lds(f"ds_read_b64_tr_b16 {rng('a', dst+2, 2)}, v{va} offset:{base+2048}", tag)
    def b_read(buf, mt, ks, dst, tag):
        va = 9 if buf < 2 else 10
        p.lds(f"ds_read_b128 {rng('a', dst, 4)}, v{va} offset:{(buf&1)*32768 + mt*4096 + ks*1024}", tag)
    ACC = 64
    gemm128(p, cfg, 16, NB, stage_wrap, a_read, b_read, ACC, 0, 16)
    stamp(p, cfg, 1)
    p.c("exchange")
    e("s_lshl_b32 s67, s45, 3")
    e("s_add_u32 s67, s67, s55")
    e("s_lshl_b32 s68, s67, 18")
    e(f"s_add_u32 s68, s68, {WS_PART}")
    e("s_add_u32 s68, s68, s61")
    e("s_lshl_b32 s69, s52, 14")
    e("s_add_u32 s69, s69, s68")
    for q in range(4):
        e(f"s_cmp_eq_u32 s52, {q}")
        e(f"s_cbranch_scc1 L_k2_skip{q}")
        e(f"s_add_u32 s70, s69, {q*65536}")
        for i in range(4):
            off = f" offset:{i*1024}" if i else ""
            e(f"buffer_store_dwordx4 {rng('v', ACC + q*16 + 4*i, 4)}, v2, s[36:39], s70 offen{off} sc1")
        e(f"s_branch L_k2_next{q}")
        e(f"L_k2_skip{q}:")
        e("s_nop 7")
        for i in range(16):
            e(f"v_mov_b32 v{48+i}, v{ACC + q*16 + i}")
        e(f"L_k2_next{q}:")
    e("s_waitcnt vmcnt(0)")
    e("s_barrier")
    e("s_lshl_b32 s70, s67, 8")
    e(f"s_add_u32 s70, s70, {WS_FLAG}")
    e("s_cmp_lg_u32 s3, 0")
    e("s_cbranch_scc1 L_k2_polled")
    e("s_lshl_b32 s71, s52, 2")
    e("v_mov_b32 v33, s71")
    e("v_mov_b32 v34, 1")
    e("v_mov_b32 v35, 0")
    e("s_mov_b64 s[72:73], exec")
    e("s_mov_b64 exec, 1")
    e("buffer_store_dword v34, v33, s[36:39], s70 offen sc1")
    e("s_mov_b32 s74, 0")
    e("L_k2_poll:")
    e("buffer_load_dwordx4 v[36:39], v35, s[36:39], s70 offen sc1")
    e("s_waitcnt vmcnt(0)")
    e("v_and_b32 v36, v36, v37")
    e("v_and_b32 v38, v38, v39")
    e("v_and_b32 v36, v36, v38")
    e("s_nop 0")
    e("v_readfirstlane_b32 s75, v36")
    e("s_add_u32 s74, s74, 1")
    e("s_cmp_eq_u32 s75, 1")
    e("s_cbranch_scc1 L_k2_pollok")
    e("s_cmp_lt_u32 s74, 0x100000")
    e("s_cbranch_scc1 L_k2_poll")
    e("L_k2_pollok:")
    e("s_mov_b64 exec, s[72:73]")
    e("L_k2_polled:")
    e("s_barrier")
    stamp(p, cfg, 2)
    e("s_lshl_b32 s69, s52, 16")
    e("s_add_u32 s69, s69, s68")
    for k in range(3):
        e(f"s_add_u32 s70, s52, {k+1}")
        e("s_and_b32 s70, s70, 3")
        e("s_lshl_b32 s70, s70, 14")
        e("s_add_u32 s70, s70, s69")
        for i in range(4):
            off = f" offset:{i*1024}" if i else ""
            p.vmem(f"buffer_load_dwordx4 {rng('v', 64 + k*16 + 4*i, 4)}, v2, s[36:39], s70 offen{off} sc1", ('x', k))
    e("s_and_b32 s70, s52, 1")
    e("s_lshr_b32 s71, s52, 1")
    e("s_lshl_b32 s72, s45, 2")
    e("s_lshl_b32 s73, s59, 1")
    e("s_add_u32 s72, s72, s73")
    e("s_add_u32 s72, s72, s70")
    e("s_lshl_b32 s72, s72, 16")
    e("s_lshl_b32 s73, s55, 8")
    e("s_add_u32 s72, s72, s73")
    e("s_lshl_b32 s73, s58, 7")
    e("s_add_u32 s72, s72, s73")
    e("s_lshl_b32 s73, s71, 6")
    e("s_add_u32 s72, s72, s73")
    e("v_lshlrev_b32 v33, 11, v46")
    e("v_lshl_add_u32 v33, v40, 4, v33")
    for k in range(3):
        p.wait_vm(('x', k))
        for i in range(16):
            e(f"v_add_f32 v{48+i}, v{48+i}, v{64+k*16+i}")
    for j in range(2):
        for i in range(4):
            e(f"v_cvt_pk_bf16_f32 v{16+j*4+i}, v{48+8*j+2*i}, v{48+8*j+2*i+1}")
    e("buffer_store_dwordx4 v[16:19], v33, s[20:23], s72 offen")
    e("buffer_store_dwordx4 v[20:23], v33, s[20:23], s72 offen offset:32")
    if cfg.stamps:
        e("s_waitcnt vmcnt(0)")
    stamp(p, cfg, 3)
    stamp_flush(p, cfg, 4, 32, "L_k2_st")
    e("L_k2_end:")
    e("s_endpgm")
    return p.L

def build(cfg, only=None):
    k1, n1 = fix_hazards(gen_k1(cfg))
    k2, n2 = fix_hazards(gen_k2(cfg))
    o = []
    if only != 'k2': o.append("; @launch kernel=mha_attn_kernel grid=(256,1,1) block=(256,1,1) lds=163840")
    if only != 'k1': o.append("; @launch kernel=mha_oproj_kernel grid=(256,1,1) block=(256,1,1) lds=131072")
    o.append('.amdgcn_target "amdgcn-amd-amdhsa--gfx950"')
    o.append(".text")
    for nm, body in (("mha_attn_kernel", k1), ("mha_oproj_kernel", k2)):
        o.append(f".globl {nm}")
        o.append(".p2align 8")
        o.append(f".type {nm},@function")
        o.append(f"{nm}:")
        o += ["    " + x if not x.endswith(':') else x for x in body]
    o.append('.section .rodata,"a"')
    o.append(".p2align 6")
    o.append(kd("mha_attn_kernel", 512, 256))
    o.append(".p2align 6")
    o.append(kd("mha_oproj_kernel", 160, 128))
    return "\n".join(o) + "\n", (n1, n2)

if __name__ == "__main__":
    cfg = Cfg()
    out = "k.s"
    only = None
    for a in sys.argv[1:]:
        if a.startswith("out="): out = a[4:]
        elif a.startswith("only="): only = a[5:]
        else:
            k, v = a.split("=")
            setattr(cfg, k, eval(v))
    s, n = build(cfg, only)
    open(out, "w").write(s)
    print("nops added:", n, "lines:", s.count("\n"))
```

```python
import sys, math, struct
from asmlib import Prog, fix_hazards, rng

NAME = "standalone__mha_block_cached__near_ridge"
C_SCALE = (128 ** -0.5) * math.log2(math.e)
def f32(x): return "0x%08x" % struct.unpack("<I", struct.pack("<f", x))[0]

REGION = 40960
SLOT = 8192
WS_O = 0
WS_PART = 0x800000
WS_FLAG = 0x1800000
WS_SIZE = 0x2000000
WS_STAMP = 0xF000000
SPIN_MAX = 0x40000

class Cfg:
    kv_nt = True
    stamps = False
    rot = True
    thr = 8.0
    npark = 4
    npark2 = 2
    wo_touch = 3
    kv_first = 0
    trot = False
    abl = ''

def srd(p, base, src, size):
    p.e(f"s_mov_b32 s{base}, s{src}")
    p.e(f"s_mov_b32 s{base+1}, s{src+1}")
    p.e(f"s_mov_b32 s{base+2}, {size}")
    p.e(f"s_mov_b32 s{base+3}, 0x20000")

def gen(cfg):
    p = Prog()
    e = p.e
    def stamp(i, cyc=False):
        if cfg.stamps:
            e(f"{'s_memtime' if cyc else 's_memrealtime'} s[{76+2*i}:{77+2*i}]")
    NST = 12
    e("s_cmp_ge_u32 s2, 256")
    e("s_cbranch_scc1 L_end")
    stamp(0)
    e("s_load_dwordx8 s[4:11], s[0:1], 0")
    e("s_load_dwordx8 s[12:19], s[0:1], 32")
    e("s_memrealtime s[68:69]")
    e("v_lshrrev_b32 v2, 6, v0")
    e("v_and_b32 v1, 63, v0")
    e("v_readfirstlane_b32 s3, v2")
    e("s_and_b32 s52, s2, 3")
    e("s_lshr_b32 s53, s2, 2")
    e("s_and_b32 s53, s53, 1")
    e("s_lshr_b32 s54, s2, 3")
    e("s_and_b32 s55, s54, 7")
    e("s_lshl_b32 s44, s52, 3")
    e("s_add_u32 s44, s44, s55")
    e("s_lshr_b32 s54, s54, 3")
    e("s_lshl_b32 s45, s53, 2")
    e("s_add_u32 s45, s45, s54")
    if cfg.rot:
        e("s_lshl_b32 s46, s55, 1")
        e("s_lshl_b32 s51, s54, 2")
        e("s_add_u32 s46, s46, s51")
    else:
        e("s_mov_b32 s46, 0")
    e("v_lshrrev_b32 v40, 5, v1")
    e("v_bfe_u32 v41, v1, 4, 1")
    e("v_bfe_u32 v42, v1, 2, 2")
    e("v_and_b32 v43, 3, v1")
    e("v_lshrrev_b32 v44, 4, v1")
    e("v_and_b32 v45, 15, v1")
    e("v_and_b32 v46, 31, v1")
    e("s_and_b32 s58, s3, 1")
    e("s_lshr_b32 s59, s3, 1")
    e(f"s_mul_i32 s50, s3, {REGION}")
    e("s_lshl_b32 s61, s3, 10")
    e("s_lshl_b32 s47, s45, 18")
    e("s_lshl_b32 s51, s3, 14")
    e("s_add_u32 s47, s47, s51")
    e("s_lshl_b32 s48, s44, 8")
    e("s_lshl_b32 s51, s3, 15")
    e("s_add_u32 s48, s48, s51")
    e("s_lshl_b32 s49, s45, 1")
    e("s_add_u32 s49, s49, s59")
    e("s_lshl_b32 s49, s49, 5")
    e("s_add_u32 s49, s49, s44")
    e("s_lshl_b32 s49, s49, 17")
    e("s_lshl_b32 s51, s58, 16")
    e("s_add_u32 s49, s49, s51")
    if cfg.trot:
        e("s_lshr_b32 s57, s2, 3")
        e("s_add_u32 s57, s57, s2")
        e("s_lshl_b32 s51, s3, 1")
        e("s_add_u32 s57, s57, s51")
    e(f"s_mov_b32 s56, {f32(C_SCALE)}")
    e("s_lshl_b32 s51, s58, 2")
    e("v_add_u32 v32, s51, v44")
    e("v_and_b32 v33, 7, v1")
    e("v_xor_b32 v32, v32, v33")
    e("v_lshlrev_b32 v32, 4, v32")
    e("v_lshrrev_b32 v33, 3, v1")
    e("v_lshl_add_u32 v2, v33, 11, v32")
    e("v_lshlrev_b32 v32, 2, v44")
    e("v_xor_b32 v32, v32, v45")
    e("v_lshlrev_b32 v32, 4, v32")
    e("v_lshl_add_u32 v3, v44, 13, v32")
    e("v_lshl_add_u32 v8, v44, 8, v32")
    e("v_lshl_add_u32 v47, v44, 11, v32")
    for j in range(4):
        e(f"v_add_u32 v32, {4*j}, v44")
        e("v_xor_b32 v32, v32, v45")
        e("v_lshlrev_b32 v32, 4, v32")
        e(f"v_lshl_add_u32 v{4+j}, v44, 8, v32")
    e("v_lshl_add_u32 v31, v1, 4, s50")
    e("s_waitcnt lgkmcnt(0)")
    srd(p, 24, 6, 67108864)
    srd(p, 28, 8, 67108864)
    srd(p, 20, 4, 2097152)
    srd(p, 32, 10, 8388608)
    stamp(1)

    ntf = " nt" if cfg.kv_nt else ""
    fills = ['K0', 'K1', 'V0'] + sum([[f'K{t+2}', f'V{t+1}'] for t in range(6)], []) + ['V7']
    slot_of = {f: i % 5 for i, f in enumerate(fills)}
    NP1, NP2 = cfg.npark, cfg.npark2
    PARK = 128
    park_of = {}
    for i in range(NP1 + NP2):
        park_of[fills[2 + i]] = PARK + 32 * (i % 4)
    assert NP1 <= 4
    def kv_soff(f, half):
        t = int(f[1])
        if cfg.trot:
            e(f"s_add_u32 s67, s57, {t}")
            e("s_and_b32 s67, s67, 7")
            e("s_lshl_b32 s67, s67, 13")
            e("s_add_u32 s67, s67, s49")
            if half: e("s_add_u32 s67, s67, 4096")
        else:
            e(f"s_add_u32 s67, s49, {t*8192 + half*4096}")
    def fill_part(f, j):
        isk = f[0] == 'K'
        vo = f"v{4 + (j & 3)}" if isk else "v8"
        sr = "s[24:27]" if isk else "s[28:31]"
        off = f" offset:{(j&3)*1024}" if j & 3 else ""
        key = (f, j >> 2)
        if getattr(p, 's67', None) != key:
            kv_soff(f, j >> 2); p.s67 = key
        if f in park_of:
            p.vmem(f"buffer_load_dwordx4 {rng('a', park_of[f] + 4*j, 4)}, {vo}, {sr}, s67 offen{off}{ntf}", f)
        else:
            if getattr(p, 'm0', None) != key:
                e(f"s_add_u32 m0, s50, {slot_of[f]*SLOT + (j>>2)*4096}")
                p.m0 = key
            p.vmem(f"buffer_load_dwordx4 {vo}, {sr}, s67 offen{off}{ntf} lds", f)
    def unpark(f):
        p.wait_vm(f)
        for j in range(8):
            p.lds(f"ds_write_b128 v31, {rng('a', park_of[f] + 4*j, 4)} offset:{slot_of[f]*SLOT + j*1024}", ('w', f))
    def issue_stage(s, part):
        buf = s % 3
        i = part & 3
        p.m0 = None
        if part == 0:
            e(f"s_add_u32 s63, s46, {s}")
            e("s_and_b32 s63, s63, 15")
            e("s_lshl_b32 s64, s63, 7")
            e("s_add_u32 s64, s64, s47")
            e("s_lshl_b32 s65, s63, 19")
            e("s_add_u32 s65, s65, s48")
        if part < 4:
            e(f"s_add_u32 m0, s61, {(i>>1)*REGION + 16384 + buf*8192 + (i&1)*4096}")
            e(f"s_add_u32 s66, s64, {i*65536}")
            p.vmem("buffer_load_dwordx4 v2, s[20:23], s66 offen lds", ('st', s))
        else:
            e(f"s_add_u32 m0, s61, {(2+(i>>1))*REGION + 16384 + buf*8192 + (i&1)*4096}")
            e(f"s_add_u32 s66, s65, {i*16*8192}")
            p.vmem("buffer_load_dwordx4 v3, s[32:35], s66 offen lds", ('st', s))
    def addr_setup():
        srd(p, 36, 18, WS_SIZE)
        srd(p, 40, 12, 8388608)
        e(f"s_mul_i32 s51, s59, {REGION}")
        e("v_bfe_u32 v33, v1, 1, 3")
        e("v_lshl_add_u32 v34, v46, 7, s51")
        for ks in range(4):
            e(f"v_add_u32 v32, {2*ks}, v40")
            e("v_xor_b32 v32, v32, v33")
            e(f"v_lshl_add_u32 v{9+ks}, v32, 4, v34")
        e("v_lshl_add_u32 v33, v40, 3, v42")
        e("v_lshlrev_b32 v33, 8, v33")
        e("v_lshl_add_u32 v33, v41, 5, v33")
        e("v_and_b32 v34, 1, v43")
        e("v_lshlrev_b32 v34, 1, v34")
        e("v_lshrrev_b32 v35, 1, v43")
        e("v_or_b32 v39, v34, v35")
        e("v_lshl_add_u32 v33, v39, 3, v33")
        e(f"v_add_u32 v33, {2*REGION + 16384}, v33")
        e("s_lshl_b32 s51, s58, 1")
        for dt in range(2):
            e(f"s_add_u32 s62, s51, {dt}")
            e("v_xor_b32 v32, s62, v42")
            e(f"v_lshl_add_u32 v{13+dt}, v32, 6, v33")
        e("v_lshl_add_u32 v34, v46, 8, s50")
        for s in range(8):
            e(f"v_add_u32 v32, {2*s}, v40")
            e("v_xor_b32 v32, v32, v45")
            e(f"v_lshl_add_u32 v{15+s}, v32, 4, v34")
        e("v_lshl_add_u32 v33, v40, 2, v42")
        e("v_lshl_add_u32 v33, v33, 8, s50")
        e("v_lshl_add_u32 v33, v41, 5, v33")
        e("v_lshl_add_u32 v33, v43, 3, v33")
        for T in range(4):
            e(f"v_xor_b32 v32, {T}, v42")
            e(f"v_lshl_add_u32 v{23+T}, v32, 6, v33")
        e("s_or_b32 s62, s2, s3")
        e("s_cbranch_scc1 L_nopub")
        e("s_or_b32 s68, s68, 1")
        e("v_mov_b32 v36, s68")
        e("v_mov_b32 v35, 0")
        e("s_mov_b64 exec, 1")
        e("global_store_dword v35, v36, s[16:17] sc1")
        e("s_mov_b64 exec, -1")
        e("L_nopub:")

    early = [(f, j) for f in fills[:2 + NP1] for j in range(8)]
    for _ in range(cfg.kv_first): fill_part(*early.pop(0))
    QACC, FA, FB = 64, 64, 80
    for s in range(2):
        for part in range(8): issue_stage(s, part)
    addr_setup()
    n_early = len(early)
    slots_total = 16 * 4
    def q_reads(s, ks):
        buf = s % 3; par = ks & 1
        for dt in range(2):
            base = (ks >> 1) * REGION + buf * 8192 + (ks & 1) * 4096
            d = FA + par * 8 + dt * 4
            p.lds(f"ds_read_b64_tr_b16 {rng('a', d, 2)}, v{13+dt} offset:{base}", ('f', s, ks))
            p.lds(f"ds_read_b64_tr_b16 {rng('a', d+2, 2)}, v{13+dt} offset:{base+1024}", ('f', s, ks))
        for qt in range(2):
            d = FB + par * 8 + qt * 4
            p.lds(f"ds_read_b128 {rng('a', d, 4)}, v{9+ks} offset:{16384 + buf*8192 + qt*4096}", ('f', s, ks))
    done_early = 0
    for s in range(16):
        p.c(f"q stage {s}")
        p.wait_vm(('st', s))
        e("s_barrier")
        if s == 0: stamp(2)
        q_reads(s, 0)
        for ks in range(4):
            if ks < 3: q_reads(s, ks + 1)
            p.wait_lg(('f', s, ks))
            par = ks & 1
            n = 0
            for at in range(2):
                for bt in range(2):
                    d = QACC + (at * 2 + bt) * 16
                    cin = "0" if (s == 0 and ks == 0) else rng('v', d, 16)
                    e(f"v_mfma_f32_32x32x16_bf16 {rng('v', d, 16)}, {rng('a', FA + par*8 + at*4, 4)}, {rng('a', FB + par*8 + bt*4, 4)}, {cin}")
                    if n in (0, 2) and s + 2 < 16:
                        issue_stage(s + 2, ks * 2 + n // 2)
                    if n == 3:
                        tgt = ((s * 4 + ks + 1) * n_early + slots_total - 1) // slots_total
                        while done_early < tgt:
                            fill_part(*early.pop(0)); done_early += 1
                    n += 1
    stamp(3)
    p.c("Q exchange")
    tmp = 128
    for dt in range(2):
        for qt in range(2):
            a = QACC + (dt * 2 + qt) * 16
            for j in range(2):
                r = tmp + ((dt * 2 + j) * 2 + qt) * 4
                for i in range(4):
                    e(f"v_cvt_pk_bf16_f32 v{r+i}, v{a + 8*j + 2*i}, v{a + 8*j + 2*i + 1}")
                p.lds(f"ds_write_b128 v31, {rng('v', r, 4)} offset:{4*SLOT + ((dt*2+j)*2+qt)*1024}", 'qw')
    p.wait_lg_all()
    e("s_barrier")
    e(f"s_mul_i32 s51, s59, {2*REGION}")
    e("s_lshl_b32 s62, s58, 10")
    e("v_lshl_add_u32 v33, v1, 4, s51")
    e("v_add_u32 v34, s62, v33")
    e("s_xor_b32 s62, s62, 1024")
    e("v_add_u32 v35, s62, v33")
    e(f"v_add_u32 v36, {REGION}, v34")
    e(f"v_add_u32 v37, {REGION}, v35")
    for ks in range(8):
        for qt in range(2):
            va = (34 + qt) if ks < 4 else (36 + qt)
            p.lds(f"ds_read_b128 {rng('a', (ks*2+qt)*4, 4)}, v{va} offset:{4*SLOT + (ks&3)*2048}", 'qr')
    pend = []
    free_slot = set()
    unparked = set()
    def do_unpark(i):
        f = fills[i]
        unpark(f); unparked.add(i)
        nxt = i + 4
        if 2 + NP1 <= nxt < 2 + NP1 + NP2:
            p.wait_lg(('w', f))
            for j in range(8): pend.append((fills[nxt], j))
    def place(i):
        if i >= 16: return
        f = fills[i]
        free_slot.add(i)
        if f in park_of:
            if i < 2 + NP1: do_unpark(i)
        else:
            for j in range(8): pend.append((f, j))
    def late_unpark(upto):
        for i in range(2, min(upto, 15) + 1):
            if fills[i] in park_of and i in free_slot and i not in unparked:
                while any((not callable(x)) and x[0] == fills[i] for x in pend): drain(1)
                do_unpark(i)
    for n in range(2 + NP1, 2 + NP1 + NP2):
        if n - 4 < 2:
            for j in range(8): pend.append((fills[n], j))
    def drain(n):
        for _ in range(n):
            if pend:
                x = pend.pop(0)
                if callable(x): x()
                else: fill_part(*x)
    place(2); drain(32)
    place(3); drain(32)
    p.wait_lg_all()
    e("s_barrier")
    place(4); drain(32)

    KF, VF = 64, 96
    SB = [64, 96]
    PB = 48
    OB = 128
    NM = [27, 28]; LS = [29, 30]
    def ready(f):
        if f in park_of:
            late_unpark(fills.index(f))
            p.wait_lg(('w', f))
        else: p.wait_vm(f)
    def k_reads(t):
        ready(f'K{t}')
        for s in range(8):
            p.lds(f"ds_read_b128 {rng('a', KF + 4*s, 4)}, v{15+s} offset:{slot_of[f'K{t}']*SLOT}", ('k', t, s))
    def v_reads(t):
        ready(f'V{t}')
        for j in range(2):
            for T in range(4):
                d = VF + (j * 4 + T) * 4
                b = slot_of[f'V{t}'] * SLOT + j * 4096
                p.lds(f"ds_read_b64_tr_b16 {rng('a', d, 2)}, v{23+T} offset:{b}", ('v', t, j, T))
                p.lds(f"ds_read_b64_tr_b16 {rng('a', d+2, 2)}, v{23+T} offset:{b+2048}", ('v', t, j, T))
    def qk_mfmas(t):
        out = []
        S = SB[t & 1]
        for s in range(8):
            for qt in range(2):
                d = S + qt * 16
                cin = "0" if s == 0 else rng('v', d, 16)
                out.append((('k', t, s), f"v_mfma_f32_32x32x16_bf16 {rng('v', d, 16)}, {rng('a', KF+4*s, 4)}, {rng('a', (s*2+qt)*4, 4)}, {cin}"))
        return out
    def pv_mfmas(t):
        out = []
        for j in range(2):
            for T in range(4):
                for qt in range(2):
                    d = OB + (T * 2 + qt) * 16
                    cin = "0" if (t == 0 and j == 0) else rng('v', d, 16)
                    out.append((('v', t, j, T), f"v_mfma_f32_32x32x16_bf16 {rng('v', d, 16)}, {rng('a', VF+(j*4+T)*4, 4)}, {rng('v', PB+(qt*2+j)*4, 4)}, {cin}"))
        return out
    def tile_max(t):
        S = SB[t & 1]
        out = []
        for qt in range(2):
            b = S + qt * 16
            tm = 32 + qt
            out.append(f"v_max3_f32 v{tm}, v{b}, v{b+1}, v{b+2}")
            for i in range(3, 15, 2):
                out.append(f"v_max3_f32 v{tm}, v{tm}, v{b+i}, v{b+i+1}")
            out.append(f"v_max_f32 v{tm}, v{tm}, v{b+15}")
        a, b2 = out[:8], out[8:]
        return [x for pr in zip(a, b2) for x in pr]
    rare = []
    def max_update(t):
        if t == 0:
            for qt in range(2): e(f"v_mov_b32 v{34+qt}, v{32+qt}")
            for qt in range(2): e(f"v_permlane32_swap_b32 v{32+qt}, v{34+qt}")
            for qt in range(2): e(f"v_max_f32 v{32+qt}, v{32+qt}, v{34+qt}")
            for qt in range(2): e(f"v_mul_f32 v{NM[qt]}, s56, v{32+qt}")
            for qt in range(2):
                e(f"v_sub_f32 v{NM[qt]}, 0, v{NM[qt]}")
                e(f"v_mov_b32 v{LS[qt]}, 0")
        else:
            e(f"v_fma_f32 v34, v32, s56, v{NM[0]}")
            e(f"v_fma_f32 v35, v33, s56, v{NM[1]}")
            e("v_max_f32 v34, v34, v35")
            e(f"v_cmp_lt_f32 vcc, {f32(cfg.thr)}, v34")
            e(f"s_cbranch_vccz L_back{t}")
            e(f"s_getpc_b64 s[72:73]")
            e(f"s_branch L_rare")
            e(f"L_back{t}:")
    r = ["L_rare:", "s_nop 15"]
    for qt in range(2): r.append(f"v_mov_b32 v{34+qt}, v{32+qt}")
    r.append("s_nop 1")
    for qt in range(2): r.append(f"v_permlane32_swap_b32 v{32+qt}, v{34+qt}")
    r.append("s_nop 1")
    for qt in range(2):
        r.append(f"v_max_f32 v{32+qt}, v{32+qt}, v{34+qt}")
        r.append(f"v_mul_f32 v{32+qt}, s56, v{32+qt}")
        r.append(f"v_max_f32 v{32+qt}, v{32+qt}, -v{NM[qt]}")
        r.append(f"v_add_f32 v{34+qt}, v{32+qt}, v{NM[qt]}")
        r.append(f"v_exp_f32 v{34+qt}, -v{34+qt}")
        r.append(f"v_sub_f32 v{NM[qt]}, 0, v{32+qt}")
        r.append("s_nop 0")
        r.append(f"v_mul_f32 v{LS[qt]}, v{LS[qt]}, v{34+qt}")
        for T in range(4):
            for i in range(16):
                o = OB + (T * 2 + qt) * 16 + i
                r.append(f"v_mul_f32 v{o}, v{o}, v{34+qt}")
    r.append("s_add_u32 s72, s72, 4")
    r.append("s_addc_u32 s73, s73, 0")
    r.append("s_nop 3")
    r.append("s_setpc_b64 s[72:73]")
    rare = r
    def softmax_ops(t):
        S = SB[t & 1]
        out = []
        for j in range(2):
            for qt in range(2):
                b = S + qt * 16 + 8 * j
                for i in range(8): out.append(f"v_fma_f32 v{b+i}, v{b+i}, s56, v{NM[qt]}")
                for i in range(8): out.append(f"v_exp_f32 v{b+i}, v{b+i}")
                for i in range(4): out.append(f"v_cvt_pk_bf16_f32 v{PB+(qt*2+j)*4+i}, v{b+2*i}, v{b+2*i+1}")
                for i in range(8): out.append(f"v_add_f32 v{LS[qt]}, v{LS[qt]}, v{b+i}")
        return out
    def interleave(mf, fill):
        nf = len(fill); k = 0
        for i, (tag, m) in enumerate(mf):
            p.wait_lg(tag)
            e(m)
            tgt = (i + 1) * nf // len(mf)
            while k < tgt:
                e(fill[k]); k += 1
            if i % 2 == 1: drain(1)
    def release(f):
        place(fills.index(f) + 5)
    def wo_setup():
        e("s_lshl_b32 s74, s52, 21")
        e("s_lshl_b32 s51, s55, 8")
        e("s_add_u32 s74, s74, s51")
    def wo_touch():
        e("s_lshl_b32 s51, s54, 19")
        e("s_lshl_b32 s62, s3, 17")
        e("s_add_u32 s51, s51, s62")
        e("s_add_u32 s51, s51, s74")
        e("v_lshlrev_b32 v36, 11, v1")
        p.vmem("buffer_load_dword v37, v36, s[40:43], s51 offen", 'touch')
        p.vmem("buffer_load_dword v37, v36, s[40:43], s51 offen offset:128", 'touch')
    def wo_part(G, j):
        area = 3 * SLOT if G % 2 == 0 else 0
        if j == 0 or True:
            pass
        if getattr(p, 'wo_g', None) != G:
            e(f"s_lshl_b32 s75, s55, 1")
            e(f"s_add_u32 s75, s75, s3")
            e(f"s_add_u32 s75, s75, {4*G}")
            e("s_and_b32 s75, s75, 15")
            e("s_lshl_b32 s75, s75, 17")
            e("s_add_u32 s75, s75, s74")
            p.wo_g = G
        p.m0 = None
        e(f"s_add_u32 m0, s50, {area + j*1024}")
        e(f"s_add_u32 s66, s75, {j*8192}")
        p.vmem("buffer_load_dwordx4 v47, s[40:43], s66 offen lds", ('wo', G))
    wo_setup()
    p.c("attention prologue")
    k_reads(0)
    interleave(qk_mfmas(0), [])
    release('K0')
    for t in range(8):
        p.c(f"tile {t}")
        if t == cfg.wo_touch: wo_touch()
        if t == 5:
            e("v_mov_b32 v0, 0")
            p.vmem("global_load_dword v38, v0, s[16:17] sc1", 'nonce')
        if t < 7: k_reads(t + 1)
        for x in tile_max(t): e(x)
        max_update(t)
        sm = softmax_ops(t)
        if t < 7:
            interleave(qk_mfmas(t + 1), sm)
            release(f'K{t+1}')
            late_unpark(fills.index(f'K{t+1}') + 2)
        else:
            for j in range(16): pend.append(lambda j=j: wo_part(0, j))
            for i, x in enumerate(sm):
                e(x)
                if i % 7 == 6: drain(1)
        v_reads(t)
        interleave(pv_mfmas(t), [])
        release(f'V{t}')
        drain(32)
        late_unpark(fills.index(f'V{t}') + 2)
    stamp(4)
    p.c("combine")
    p.wait_vm('nonce')
    e("s_mov_b32 s71, 0")
    e("L_nonce:")
    e("v_readfirstlane_b32 s70, v38")
    e("s_cmp_lg_u32 s70, 0")
    e("s_cbranch_scc1 L_nonce_ok")
    e("global_load_dword v38, v0, s[16:17] sc1")
    e("s_waitcnt vmcnt(0)")
    e("s_add_u32 s71, s71, 1")
    e(f"s_cmp_lt_u32 s71, {SPIN_MAX}")
    e("s_cbranch_scc1 L_nonce")
    e("L_nonce_ok:")
    for qt in range(2): e(f"v_mov_b32 v{34+qt}, v{LS[qt]}")
    for qt in range(2): e(f"v_permlane32_swap_b32 v{LS[qt]}, v{34+qt}")
    for qt in range(2): e(f"v_add_f32 v{LS[qt]}, v{LS[qt]}, v{34+qt}")
    e(f"v_mov_b32 v36, v{NM[1]}")
    e(f"v_mov_b32 v37, v{LS[1]}")
    p.lds(f"ds_write_b64 v31, v[36:37] offset:{16384}", 'ow')
    for T in range(4):
        for i in range(4):
            o = OB + (T * 2 + 1) * 16 + 4 * i
            p.lds(f"ds_write_b128 v31, {rng('v', o, 4)} offset:{(T*4+i)*1024}", 'ow')
    p.wait_lg_all()
    e("s_barrier")
    e(f"s_xor_b32 s51, s3, 1")
    e(f"s_mul_i32 s51, s51, {REGION}")
    e("v_lshl_add_u32 v33, v1, 4, s51")
    p.lds(f"ds_read_b64 v[36:37], v33 offset:{16384}", 'ml')
    for T in range(4):
        for i in range(4):
            p.lds(f"ds_read_b128 {rng('v', 64 + T*16 + 4*i, 4)}, v33 offset:{(T*4+i)*1024}", ('or', T))
    p.wait_lg('ml')
    e(f"v_min_f32 v38, v{NM[0]}, v36")
    e(f"v_sub_f32 v35, v38, v{NM[0]}")
    e("v_sub_f32 v38, v38, v36")
    e("v_exp_f32 v35, v35")
    e("v_exp_f32 v38, v38")
    e(f"v_mul_f32 v34, v{LS[0]}, v35")
    e("v_fma_f32 v34, v37, v38, v34")
    e("v_rcp_f32 v34, v34")
    e("v_mul_f32 v35, v35, v34")
    e("v_mul_f32 v38, v38, v34")
    e("s_lshl_b32 s47, s45, 2")
    e("s_add_u32 s47, s47, s3")
    e("s_lshl_b32 s47, s47, 18")
    e("s_lshl_b32 s62, s52, 16")
    e("s_add_u32 s47, s47, s62")
    e("s_lshl_b32 s62, s55, 13")
    e("s_add_u32 s51, s47, s62")
    e("s_add_u32 s62, s51, 4096")
    e("v_lshlrev_b32 v32, 4, v1")
    own = {}
    for T in range(4):
        p.wait_lg(('or', T))
        o = OB + (T * 2) * 16
        for i in range(16): e(f"v_mul_f32 v{o+i}, v{o+i}, v35")
        for i in range(16): e(f"v_fmac_f32 v{o+i}, v{64+T*16+i}, v38")
        for j in range(2):
            for i in range(4):
                e(f"v_cvt_pk_bf16_f32 v{o+16+j*4+i}, v{o+8*j+2*i}, v{o+8*j+2*i+1}")
            k = 2 * T + j
            own[k] = o + 16 + j * 4
            so = "s51" if k < 4 else "s62"
            off = f" offset:{(k&3)*1024}" if k & 3 else ""
            p.vmem(f"buffer_store_dwordx4 {rng('v', o+16+j*4, 4)}, v32, s[36:39], {so} offen{off} sc1", 'ost')
    e("v_lshl_add_u32 v33, v40, 2, v42")
    e("v_lshlrev_b32 v33, 8, v33")
    e("v_lshl_add_u32 v33, v41, 5, v33")
    e("v_lshl_add_u32 v33, v39, 3, v33")
    for j in range(4):
        e(f"s_xor_b32 s62, s52, {j}")
        e("v_xor_b32 v34, s62, v42")
        e(f"v_lshl_add_u32 v{2+j}, v34, 6, v33")
        for w in range(1, 4):
            e(f"v_add_u32 v{2+4*w+j}, {w*REGION}, v{2+j}")
    e("s_lshl_b32 s48, s45, 2")
    e("s_add_u32 s48, s48, s52")
    e("s_lshl_b32 s48, s48, 2")
    e("s_add_u32 s48, s48, s3")
    e("s_lshl_b32 s48, s48, 7")
    e(f"s_add_u32 s48, s48, {WS_FLAG}")
    e("s_lshl_b32 s62, s55, 2")
    e("v_mov_b32 v34, s62")
    e("v_mov_b32 v35, s70")
    e("v_and_b32 v36, 7, v1")
    e("v_lshlrev_b32 v36, 2, v36")
    p.wait_vm_all()
    e("s_mov_b64 exec, 1")
    p.vmem("buffer_store_dword v35, v34, s[36:39], s48 offen sc1", 'flag')
    e("s_mov_b64 exec, -1")
    e("s_barrier")
    stamp(5)
    for j in range(16): pend.append(lambda j=j: wo_part(1, j))
    ACC = 64
    WF = 224
    def o_frag(g, ks):
        hd, k = g >> 1, (g & 1) * 4 + ks
        if hd == 0: return rng('v', own[k], 4)
        return rng('a', ((hd - 1) * 8 + k) * 4, 4)
    def o_load(hd, k):
        if k % 4 == 0:
            e(f"s_add_u32 s63, s55, {hd}")
            e("s_and_b32 s63, s63, 7")
            e("s_lshl_b32 s63, s63, 13")
            e("s_add_u32 s63, s63, s47")
            if k: e("s_add_u32 s63, s63, 4096")
        off = f" offset:{(k&3)*1024}" if k & 3 else ""
        p.vmem(f"buffer_load_dwordx4 {rng('a', ((hd-1)*8 + k)*4, 4)}, v32, s[36:39], s63 offen{off} sc1", ('o', hd, k >> 2))
    def w_reads(g, ks):
        G, w = g >> 2, g & 3
        area = 3 * SLOT if G % 2 == 0 else 0
        par = ks & 1
        for j in range(4):
            d = WF + par * 16 + j * 4
            p.lds(f"ds_read_b64_tr_b16 {rng('a', d, 2)}, v{2+4*w+j} offset:{area + ks*4096}", ('wf', g, ks))
            p.lds(f"ds_read_b64_tr_b16 {rng('a', d+2, 2)}, v{2+4*w+j} offset:{area + ks*4096 + 2048}", ('wf', g, ks))
    def poll(label, soff, nflags_mask_lanes):
        e("s_mov_b32 s71, 0")
        e(f"{label}:")
        e(f"buffer_load_dword v37, v36, s[36:39], {soff} offen sc1")
        e("s_waitcnt vmcnt(0)")
        e("v_cmp_ne_u32 vcc, s70, v37")
        e("s_add_u32 s71, s71, 1")
        e(f"s_cbranch_vccz {label}_ok")
        e(f"s_cmp_lt_u32 s71, {SPIN_MAX}")
        e(f"s_cbranch_scc1 {label}")
        e(f"{label}_ok:")
        p.vm_done = len(p.vm)
    steps = [(g, ks) for g in range(16) for ks in range(4)]
    w_reads(0, 0)
    for idx, (g, ks) in enumerate(steps):
        if ks == 0: p.c(f"oproj stage {g}")
        if (g, ks) == (2, 0):
            drain(64)
            poll("L_pollo", "s48", 8)
            stamp(6)
            for hd in (1, 2, 3):
                for k in range(8): o_load(hd, k)
        nxt = steps[idx + 1] if idx + 1 < len(steps) else None
        if nxt and nxt[0] % 4 == 0 and nxt[1] == 0:
            nxt_barrier = True
        else:
            nxt_barrier = False
            if nxt: w_reads(*nxt)
        p.wait_lg(('wf', g, ks))
        if g >= 2: p.wait_vm(('o', g >> 1, g & 1))
        par = ks & 1
        for j in range(4):
            d = ACC + j * 16
            cin = "0" if idx == 0 else rng('v', d, 16)
            e(f"v_mfma_f32_32x32x16_bf16 {rng('v', d, 16)}, {rng('a', WF + par*16 + j*4, 4)}, {o_frag(g, ks)}, {cin}")
            if j % 2 == 0: drain(1)
        if nxt_barrier:
            G = nxt[0] >> 2
            drain(64)
            p.wait_vm(('wo', G))
            e("s_barrier")
            w_reads(*nxt)
            if G + 1 < 4:
                hds = (2 * G + 2, 2 * G + 3)
                for j in range(16):
                    pend.append(lambda j=j, hds=hds: o_load(hds[j >> 3], j & 7))
                    if j % 4 == 3:
                        for jj in range(j - 3, j + 1):
                            pend.append(lambda jj=jj, G=G: wo_part(G + 1, jj))
    stamp(7)
    p.c("exchange")
    srd(p, 20, 14, 2097152)
    e("s_lshl_b32 s67, s45, 3")
    e("s_add_u32 s67, s67, s55")
    e("s_lshl_b32 s64, s67, 18")
    e(f"s_add_u32 s64, s64, {WS_PART}")
    e("s_lshl_b32 s62, s3, 12")
    e("s_add_u32 s64, s64, s62")
    e("s_lshl_b32 s65, s67, 11")
    e(f"s_add_u32 s65, s65, {WS_FLAG + 0x10000}")
    e("s_lshl_b32 s62, s3, 7")
    e("s_add_u32 s65, s65, s62")
    for j in range(1, 4):
        e(f"s_xor_b32 s62, s52, {j}")
        e("s_lshl_b32 s62, s62, 16")
        e("s_add_u32 s62, s62, s64")
        e(f"s_add_u32 s62, s62, {j*16384}")
        for i in range(4):
            off = f" offset:{i*1024}" if i else ""
            p.vmem(f"buffer_store_dwordx4 {rng('v', ACC + j*16 + 4*i, 4)}, v32, s[36:39], s62 offen{off} sc1", 'pst')
    e("v_xor_b32 v34, s52, v1")
    e("v_lshlrev_b32 v34, 9, v34")
    e("v_lshl_add_u32 v34, v1, 2, v34")
    e("v_min_u32 v36, 2, v1")
    e("v_add_u32 v36, 1, v36")
    e("v_lshlrev_b32 v36, 2, v36")
    e("s_lshl_b32 s62, s52, 9")
    e("s_add_u32 s66, s65, s62")
    e("s_lshl_b32 s72, s45, 2")
    e("s_add_u32 s72, s72, s3")
    e("s_lshl_b32 s72, s72, 16")
    e("s_lshl_b32 s73, s55, 8")
    e("s_add_u32 s72, s72, s73")
    e("s_lshl_b32 s73, s52, 6")
    e("s_add_u32 s72, s72, s73")
    e("v_lshlrev_b32 v33, 11, v46")
    e("v_lshl_add_u32 v33, v40, 4, v33")
    p.wait_vm_all()
    e("s_mov_b64 exec, 14")
    p.vmem("buffer_store_dword v35, v34, s[36:39], s65 offen sc1", 'flag2')
    e("s_mov_b64 exec, -1")
    stamp(8)
    poll("L_pollp", "s66", 3)
    stamp(9)
    e("s_lshl_b32 s62, s52, 16")
    e("s_add_u32 s64, s64, s62")
    for j in range(1, 4):
        e(f"s_add_u32 s62, s64, {j*16384}")
        for i in range(4):
            off = f" offset:{i*1024}" if i else ""
            p.vmem(f"buffer_load_dwordx4 {rng('v', 128 + j*16 + 4*i, 4)}, v32, s[36:39], s62 offen{off} sc1", ('x', j))
    for j in range(1, 4):
        p.wait_vm(('x', j))
        for i in range(16): e(f"v_add_f32 v{ACC+i}, v{ACC+i}, v{128+j*16+i}")
    for j in range(2):
        for i in range(4):
            e(f"v_cvt_pk_bf16_f32 v{16+j*4+i}, v{ACC+8*j+2*i}, v{ACC+8*j+2*i+1}")
    e("buffer_store_dwordx4 v[16:19], v33, s[20:23], s72 offen")
    e("buffer_store_dwordx4 v[20:23], v33, s[20:23], s72 offen offset:32")
    if cfg.stamps:
        e("s_waitcnt vmcnt(0)")
        stamp(10)
        stamp(11)
        e("s_waitcnt lgkmcnt(0)")
        e("s_cmp_lg_u32 s3, 0")
        e("s_cbranch_scc1 L_end")
        e("s_lshl_b32 s60, s2, 7")
        e(f"s_add_u32 s60, s60, {WS_STAMP}")
        e("v_mov_b32 v2, s60")
        e("s_mov_b64 exec, 1")
        for i in range(NST):
            e(f"v_mov_b32 v4, s{76+2*i}")
            e(f"v_mov_b32 v5, s{77+2*i}")
            e(f"global_store_dwordx2 v2, v[4:5], s[18:19] offset:{8*i}")
            e("s_waitcnt vmcnt(0)")
    e("L_end:")
    e("s_endpgm")
    for x in rare: e(x)
    return p.L

def build(cfg):
    body, n = fix_hazards(gen(cfg))
    nm = NAME + "_kernel"
    o = ["; Fused MHA block: Q projection + attention over the KV cache + output projection, one launch.",
         "; Generated by a hand-written scheduler script (work/gen2.py).",
         "; @launch grid=(256,1,1) block=(256,1,1) lds=163840",
         '.amdgcn_target "amdgcn-amd-amdhsa--gfx950"', ".text", f".globl {nm}", ".p2align 8",
         f".type {nm},@function", f"{nm}:"]
    o += ["    " + x if not x.endswith(':') else x for x in body]
    o.append('.section .rodata,"a"')
    o.append(".p2align 6")
    o.append(f""".amdhsa_kernel {nm}
  .amdhsa_next_free_vgpr 512
  .amdhsa_next_free_sgpr 102
  .amdhsa_accum_offset 256
  .amdhsa_group_segment_fixed_size 0
  .amdhsa_kernarg_size 64
  .amdhsa_user_sgpr_count 2
  .amdhsa_user_sgpr_kernarg_segment_ptr 1
  .amdhsa_system_sgpr_workgroup_id_x 1
.end_amdhsa_kernel""")
    return "\n".join(o) + "\n", n

if __name__ == "__main__":
    cfg = Cfg()
    out = "f.s"
    for a in sys.argv[1:]:
        if a.startswith("out="): out = a[4:]
        else:
            k, v = a.split("=", 1)
            setattr(cfg, k, eval(v))
    s, n = build(cfg)
    open(out, "w").write(s)
    print(out, "nops added:", n, "lines:", s.count("\n"))
```

```python
import sys
NAME = "standalone__mha_block_cached__near_ridge_kernel"
def wrap(src, kind, out):
    s = open(src).read()
    lines = s.split("\n")
    body = "\n".join(l for l in lines if "@launch" not in l)
    main = f"; @launch kernel={NAME} grid=(256,1,1) block=(256,1,1) lds=163840"
    pl = "; @launch kernel=probe_kernel grid=(256,1,1) block=(256,1,1) lds=0"
    code = []
    e = code.append
    e(".globl probe_kernel"); e(".p2align 8"); e(".type probe_kernel,@function"); e("probe_kernel:")
    if kind in ("tlb", "both"):
        e("s_load_dwordx8 s[4:11], s[0:1], 0"); e("s_load_dwordx8 s[12:19], s[0:1], 32"); e("s_waitcnt lgkmcnt(0)")
        for i, (ptr, size) in enumerate(((4, 2097152), (6, 67108864), (8, 67108864), (10, 8388608), (12, 8388608), (14, 2097152), (18, 0x3000000))):
            e(f"s_mov_b32 s20, s{ptr}"); e(f"s_mov_b32 s21, s{ptr+1}"); e(f"s_mov_b32 s22, {size}"); e("s_mov_b32 s23, 0x20000")
            e("v_lshlrev_b32 v1, 18, v0")
            e(f"buffer_load_dword v{2+i}, v1, s[20:23], 0 offen nt")
        e("s_waitcnt vmcnt(0)")
    if kind in ("code", "both"):
        e("s_getpc_b64 s[24:25]")
        e("L_pc:")
        e(f"s_add_u32 s24, s24, {NAME} - L_pc")
        e("s_addc_u32 s25, s25, -1")
        e("v_lshlrev_b32 v1, 7, v0")
        e("global_load_dword v2, v1, s[24:25]")
        e("v_add_u32 v1, 0x1000, v1")
        e("global_load_dword v3, v1, s[24:25]")
        e("s_waitcnt vmcnt(0)")
    if kind.startswith("spin"):
        n = int(kind[4:]) * 100
        e("s_memrealtime s[4:5]"); e("s_waitcnt lgkmcnt(0)"); e(f"s_add_u32 s6, s4, {n}")
        e("L_sp:"); e("s_memrealtime s[8:9]"); e("s_waitcnt lgkmcnt(0)"); e("s_sub_u32 s10, s8, s6"); e("s_cmp_lt_i32 s10, 0"); e("s_cbranch_scc1 L_sp")
    if kind == "wts":
        e("s_cmp_ge_u32 s2, 256"); e("s_cbranch_scc1 L_pe")
        e("s_load_dwordx8 s[4:11], s[0:1], 0"); e("s_load_dwordx8 s[12:19], s[0:1], 32"); e("s_waitcnt lgkmcnt(0)")
        e("s_lshl_b32 s3, s2, 8"); e("v_add_u32 v1, s3, v0"); e("v_lshlrev_b32 v1, 7, v1")
        for i, (ptr, size) in enumerate(((4, 2097152), (10, 8388608), (12, 8388608))):
            e(f"s_mov_b32 s20, s{ptr}"); e(f"s_mov_b32 s21, s{ptr+1}"); e(f"s_mov_b32 s22, {size}"); e("s_mov_b32 s23, 0x20000")
            e(f"buffer_load_dword v{2+i}, v1, s[20:23], 0 offen")
        e("s_waitcnt vmcnt(0)")
        e("L_pe:")
    e("s_endpgm")
    kd = """.p2align 6
.amdhsa_kernel probe_kernel
  .amdhsa_next_free_vgpr 16
  .amdhsa_next_free_sgpr 32
  .amdhsa_accum_offset 16
  .amdhsa_group_segment_fixed_size 0
  .amdhsa_kernarg_size 64
  .amdhsa_user_sgpr_count 2
  .amdhsa_user_sgpr_kernarg_segment_ptr 1
  .amdhsa_system_sgpr_workgroup_id_x 1
.end_amdhsa_kernel
"""
    body = body.replace('.section .rodata,"a"', "\n".join(code) + '\n.section .rodata,"a"') + kd
    heads = {"twice": [main, main], "one": [main]}.get(kind, [pl, main])
    open(out, "w").write("\n".join(heads) + "\n" + body)
for k in ("one", "empty", "spin10", "spin30", "spin100", "wts"):
    wrap(sys.argv[1], k, f"pr_{k}.s")
```
